```python
import torch

def _softmax(x, axis=-1):
    return torch.softmax(x, dim=axis)

def _gelu(x):
    return torch.nn.functional.gelu(x, approximate='tanh')

def _silu(x):
    return torch.nn.functional.silu(x)

def _sigmoid(x):
    return torch.sigmoid(x)

def _layernorm(x, axis=-1, eps=1e-05):
    m = x.mean(dim=axis, keepdim=True)
    v = x.var(dim=axis, keepdim=True, unbiased=False)
    return (x - m) / torch.sqrt(v + eps)

def _scatter_add(tgt, idx, src, axis=0):
    return tgt.clone().index_add_(axis, idx, src)

def _segment_sum(src, seg, n):
    out = torch.zeros((n,) + src.shape[1:], dtype=src.dtype)
    return out.index_add_(0, seg, src)

def _pad(x, pw):
    flat = tuple((v for pair in reversed(pw) for v in pair))
    return torch.nn.functional.pad(x, flat)
kernel_name = 'adaLN_cond__mha_block_cached__swiglu_ffn__decode'

def setup_inputs():

    _w = lambda a: (lambda t: t.to(torch.bfloat16) if t.is_floating_point() else t)(torch.as_tensor(a))

    def _A_setup():
        B, Sq, D = (1, 1, 640)
        H, Sk, Dh = (32, 32768, 192)
        return {'x': _w((lambda *s: torch.randn(*s, dtype=torch.bfloat16) * 0.1)(B, Sq, D)), 'k_cache': _w((lambda *s: torch.randn(*s, dtype=torch.bfloat16) * 0.8)(B, H, Sk, Dh)), 'v_cache': _w((lambda *s: torch.randn(*s, dtype=torch.bfloat16) * 0.8)(B, H, Sk, Dh)), 'wq': _w((lambda *s: torch.randn(*s, dtype=torch.bfloat16) * 0.8)(D, H * Dh) * D ** (-0.5)), 'wo': _w((lambda *s: torch.randn(*s, dtype=torch.bfloat16) * 0.8)(H * Dh, D) * (H * Dh) ** (-0.5))}
    _A_in = _A_setup()

    def _B_setup():
        B, S, D, F = (1, 1, 640, 1536)
        return {'x': _w((lambda *s: torch.randn(*s, dtype=torch.bfloat16) * 0.1)(B, S, D)), 'w_gate': _w((lambda *s: torch.randn(*s, dtype=torch.bfloat16) * 0.1)(D, F)), 'w_up': _w((lambda *s: torch.randn(*s, dtype=torch.bfloat16) * 0.1)(D, F)), 'w_down': _w((lambda *s: torch.randn(*s, dtype=torch.bfloat16) * 0.1)(F, D))}
    _B_in = _B_setup()
    return {'A_x': _A_in['x'], 'A_k_cache': _A_in['k_cache'], 'A_v_cache': _A_in['v_cache'], 'A_wq': _A_in['wq'], 'A_wo': _A_in['wo'], 'B_x': _B_in['x'], 'B_w_gate': _B_in['w_gate'], 'B_w_up': _B_in['w_up'], 'B_w_down': _B_in['w_down'], 'c': _w((lambda *s: torch.randn(*s, dtype=torch.bfloat16) * 0.8)(1, 640) * 8.0), 'w_mod': _w((lambda *s: torch.randn(*s, dtype=torch.bfloat16) * 0.8)(640, 6 * 640) * 640 ** (-0.5) * 8.0)}

def reference(A_x, A_k_cache, A_v_cache, A_wq, A_wo, B_x, B_w_gate, B_w_up, B_w_down, c, w_mod):

    def _A_ref(x, k_cache, v_cache, wq, wo):
        B, Sq, D = x.shape
        H, Dh = (32, 192)
        q = (lambda x, *d: x.permute(*d))((x @ wq).reshape(B, Sq, H, Dh), 0, 2, 1, 3)
        scores = torch.einsum('bhqd,bhkd->bhqk', q, k_cache) * Dh ** (-0.5)
        p = _softmax(scores, axis=-1)
        o = torch.einsum('bhqk,bhkd->bhqd', p, v_cache)
        return (lambda x, *d: x.permute(*d))(o, 0, 2, 1, 3).reshape(B, Sq, H * Dh) @ wo

    def _B_ref(x, w_gate, w_up, w_down):
        g = _silu(x @ w_gate)
        u = x @ w_up
        return g * u @ w_down
    x = A_x
    mod = (_silu(c) @ w_mod).reshape(c.shape[0], 6, 1, -1)
    sa, ca, ga, sb, cb, gb = (mod[:, 0].clone(), mod[:, 1].clone(), mod[:, 2].clone(), mod[:, 3].clone(), mod[:, 4].clone(), mod[:, 5].clone())
    h = _layernorm(x, axis=-1) * (1 + ca) + sa
    x = x + ga * _A_ref(h, A_k_cache, A_v_cache, A_wq, A_wo)
    h = _layernorm(x, axis=-1) * (1 + cb) + sb
    x = x + gb * _B_ref(h, B_w_gate, B_w_up, B_w_down)
    return x
```

```python
import sys
KN = "adaLN_cond__mha_block_cached__swiglu_ffn__decode_kernel"

WS_MOD = 0
WS_Q   = 16 * 1024
WS_ML  = 32 * 1024
WS_OP  = 64 * 1024
WS_AP  = 320 * 1024
WS_ACT = 352 * 1024
SENT = 0xFFFFFFFF
L_MODP = 0
L_H    = 4096
L_QP   = 5632
L_Q    = 6400
L_ML   = 6784
L_OW   = 8192
L_O    = 14336
L_RED  = 16384
L_X1   = 17408
L_ST   = 19968
L_RED2 = 20480
L_RED3 = 20992
LDS_BYTES = 24576

RING0 = 64
NSLOT = 16
SPIN_LIMIT = 1 << 20

class G:
    def __init__(self):
        self.L = []
        self.lab = 0
    def __call__(self, s):
        self.L.append("    " + s)
    def label(self, name):
        self.L.append(name + ":")
    def newlabel(self, p="L"):
        self.lab += 1
        return "%s_%d" % (p, self.lab)
    def c(self, s):
        self.L.append("    ; " + s)

DPPM = " row_mask:0xf bank_mask:0xf"
def vr(a, n): return "v[%d:%d]" % (a, a + n - 1)
def sr(a, n): return "s[%d:%d]" % (a, a + n - 1)

def gen(opts=None):
    o = dict(dump=False)
    if opts: o.update(opts)
    g = G(); A = g
    hdr = []
    hdr.append("; @launch grid=(256,1,1) block=(512,1,1) lds=%d" % LDS_BYTES)
    hdr.append('.amdgcn_target "amdgcn-amd-amdhsa--gfx950"')
    hdr.append(".text"); hdr.append(".globl " + KN); hdr.append(".p2align 8")
    hdr.append(".type %s,@function" % KN); hdr.append(KN + ":")

    S_WAVE = 3
    P_X, P_K, P_V, P_WQ, P_WO, P_BX, P_WG, P_WU, P_WD, P_C, P_WMOD, P_OUT, P_DBG, P_WS = [16 + 2 * i for i in range(14)]
    S_XC, S_J, S_HEAD, S_SPLIT = 44, 45, 46, 47
    R_K, R_V, R_CUR = 48, 52, 56
    S_ROFF, S_RST, S_RND = 60, 61, 62
    S_SPIN = 63
    S_MASK = 64
    R_T0, R_T1, R_T2 = 80, 84, 88
    S_PM, S_R1, S_R2, S_KG, S_CG = 92, 93, 94, 95, 96
    S_T = 97
    V_TID, V_LANE, V_ROFF = 0, 1, 2
    V_Q, V_S, V_ACC = 16, 28, 36

    def nop(n): A("s_nop %d" % n)
    def srd(r, ptr, nbytes, off_lo=None, off_hi=None):
        if off_lo is None:
            A("s_mov_b32 s%d, s%d" % (r, ptr)); A("s_mov_b32 s%d, s%d" % (r + 1, ptr + 1))
        else:
            A("s_add_u32 s%d, s%d, s%d" % (r, ptr, off_lo)); A("s_addc_u32 s%d, s%d, s%d" % (r + 1, ptr + 1, off_hi))
        A("s_mov_b32 s%d, %s" % (r + 2, nbytes if isinstance(nbytes, str) else str(nbytes)))
        A("s_mov_b32 s%d, 0x20000" % (r + 3))
    def rne(dst, src):
        A("v_cvt_pk_bf16_f32 v%d, v%d, v%d" % (dst, src, src))
        A("v_and_b32 v%d, 0xffff0000, v%d" % (dst, dst))
    def dpp_add(regs, ctrl, op="v_add_f32"):
        for r in regs:
            A("%s_dpp v%d, v%d, v%d %s%s" % (op, r, r, r, ctrl, DPPM))
    def dpp_steps(regs, ctrls, op="v_add_f32"):
        n = len(regs)
        for ctl in ctrls:
            if n < 3: nop(2 - n + 0 if n == 2 else 1)
            dpp_add(regs, ctl, op)
    def swap_reduce(regs, which):
        n = len(regs) // 2
        nop(1)
        for i in range(n):
            A("v_permlane%d_swap_b32 v%d, v%d" % (which, regs[i], regs[i + n]))
        nop(1)
        for i in range(n):
            A("v_add_f32 v%d, v%d, v%d" % (regs[i], regs[i], regs[i + n]))
        return regs[:n]
    def allreduce64(r, tmp, op="v_add_f32"):
        for ctl in ["quad_perm:[1,0,3,2]", "quad_perm:[2,3,0,1]", "row_half_mirror", "row_mirror"]:
            nop(1)
            A("%s_dpp v%d, v%d, v%d %s%s" % (op, r, r, r, ctl, DPPM))
        for which in (16, 32):
            A("v_mov_b32 v%d, v%d" % (tmp, r)); nop(1)
            A("v_permlane%d_swap_b32 v%d, v%d" % (which, r, tmp)); nop(1)
            A("%s v%d, v%d, v%d" % (op, r, r, tmp))
    def exp_e(dst, src, t0):
        A("v_mul_f32 v%d, 0x3fb8aa3b, v%d" % (t0, src))
        A("v_exp_f32 v%d, v%d" % (dst, t0))
        A("s_mov_b32 s%d, 0x3fb8aa3b" % S_T)
        A("v_fma_f32 v%d, v%d, s%d, -v%d" % (t0, src, S_T, t0))
        A("s_mov_b32 s%d, 0x32a57060" % S_T)
        A("v_fma_f32 v%d, v%d, s%d, v%d" % (t0, src, S_T, t0))
        A("v_mul_f32 v%d, 0x3f317218, v%d" % (t0, t0))
        A("v_fma_f32 v%d, v%d, v%d, v%d" % (dst, dst, t0, dst))
    def div(dst, num, den, t0, t1):
        A("v_rcp_f32 v%d, v%d" % (t0, den)); nop(0)
        A("v_mul_f32 v%d, v%d, v%d" % (t1, num, t0))
        A("v_fma_f32 v%d, -v%d, v%d, v%d" % (dst, t1, den, num))
        A("v_fma_f32 v%d, v%d, v%d, v%d" % (dst, dst, t0, t1))
    def silu(dst, x, t0, t1, t2):
        A("v_sub_f32 v%d, 0, v%d" % (t2, x))
        A("v_min_f32 v%d, 0x42b00000, v%d" % (t2, t2))
        A("v_max_f32 v%d, 0xc2b00000, v%d" % (t2, t2))
        exp_e(t1, t2, t0)
        A("v_add_f32 v%d, 1.0, v%d" % (t1, t1))
        div(dst, x, t1, t0, t2)
    def wsbase(sreg, off):
        A("s_add_u32 s%d, s%d, %d" % (sreg, P_WS, off)); A("s_addc_u32 s%d, s%d, 0" % (sreg + 1, P_WS + 1))
    def spin_begin():
        A("s_mov_b32 s%d, 0" % S_SPIN)
        l = g.newlabel("L_spin"); g.label(l); return l
    def spin_end(l, sleep=1):
        done = g.newlabel("L_spun")
        nop(1)
        A("s_cbranch_vccz %s" % done)
        A("s_add_u32 s%d, s%d, 1" % (S_SPIN, S_SPIN))
        A("s_cmp_ge_u32 s%d, %d" % (S_SPIN, SPIN_LIMIT))
        A("s_cbranch_scc1 %s" % done)
        if sleep: A("s_sleep %d" % sleep)
        A("s_branch %s" % l)
        g.label(done)
    def if_wave0():
        l = g.newlabel("L_nw0")
        A("s_cmp_lg_u32 s%d, 0" % S_WAVE); A("s_cbranch_scc1 %s" % l)
        return l
    def mask_begin(sv):
        l = g.newlabel("L_m")
        A("s_and_saveexec_b64 %s, vcc" % sr(sv, 2)); A("s_cbranch_execz %s" % l)
        return l
    def mask_end(l, sv):
        g.label(l); A("s_mov_b64 exec, %s" % sr(sv, 2))

    g.c("---- prologue ----")
    A("s_cmp_ge_u32 s2, 256"); A("s_cbranch_scc1 L_done")
    A("s_load_dwordx16 s[16:31], s[0:1], 0")
    A("s_load_dwordx8 s[32:39], s[0:1], 64")
    A("s_load_dwordx4 s[40:43], s[0:1], 96")
    A("v_lshrrev_b32 v3, 6, v0")
    A("v_and_b32 v%d, 63, v0" % V_LANE)
    A("v_readfirstlane_b32 s%d, v3" % S_WAVE)
    A("s_and_b32 s%d, s2, 7" % S_XC)
    A("s_lshr_b32 s%d, s2, 3" % S_J)
    A("s_lshr_b32 s%d, s%d, 3" % (S_T, S_J))
    A("s_lshl_b32 s%d, s%d, 2" % (S_HEAD, S_XC)); A("s_add_u32 s%d, s%d, s%d" % (S_HEAD, S_HEAD, S_T))
    A("s_and_b32 s%d, s%d, 7" % (S_SPLIT, S_J))
    A("s_lshr_b32 s%d, s%d, 1" % (S_T, S_J)); A("s_lshl_b32 s%d, s%d, 4" % (S_PM, S_T))
    A("s_lshl_b32 s%d, s%d, 1" % (S_T, S_XC)); A("s_add_u32 s%d, s%d, s%d" % (S_PM, S_PM, S_T))
    A("s_and_b32 s%d, s%d, 1" % (S_T, S_J)); A("s_add_u32 s%d, s%d, s%d" % (S_PM, S_PM, S_T))
    A("s_lshr_b32 s%d, s%d, 2" % (S_T, S_J)); A("s_lshl_b32 s%d, s%d, 5" % (S_R1, S_T))
    A("s_lshl_b32 s%d, s%d, 2" % (S_T, S_XC)); A("s_add_u32 s%d, s%d, s%d" % (S_R1, S_R1, S_T))
    A("s_and_b32 s%d, s%d, 3" % (S_T, S_J)); A("s_add_u32 s%d, s%d, s%d" % (S_R1, S_R1, S_T))
    A("s_lshr_b32 s%d, s%d, 3" % (S_T, S_J)); A("s_lshl_b32 s%d, s%d, 6" % (S_R2, S_T))
    A("s_lshl_b32 s%d, s%d, 3" % (S_T, S_XC)); A("s_add_u32 s%d, s%d, s%d" % (S_R2, S_R2, S_T))
    A("s_add_u32 s%d, s%d, s%d" % (S_R2, S_R2, S_SPLIT))
    A("s_mul_i32 s%d, s%d, 205" % (S_KG, S_R1)); A("s_lshr_b32 s%d, s%d, 13" % (S_KG, S_KG))
    A("s_mul_i32 s%d, s%d, 40" % (S_T, S_KG)); A("s_sub_u32 s%d, s%d, s%d" % (S_CG, S_R1, S_T))
    A("v_and_b32 v3, 7, v%d" % V_LANE)
    for j in range(8):
        A("v_cmp_eq_u32 %s, %d, v3" % (sr(S_MASK + 2 * j, 2), j))
    A("v_lshrrev_b32 v4, 3, v%d" % V_LANE)
    A("v_mul_u32_u24 v4, 384, v4")
    A("v_lshl_add_u32 v%d, v3, 4, v4" % V_ROFF)
    A("s_waitcnt lgkmcnt(0)")
    A("s_lshl_b32 s%d, s%d, 3" % (S_T, S_HEAD)); A("s_add_u32 s%d, s%d, s%d" % (S_T, S_T, S_SPLIT))
    A("s_mul_i32 s%d, s%d, 1572864" % (S_T + 1, S_T)); A("s_mul_hi_u32 s%d, s%d, 1572864" % (S_T + 2, S_T))
    srd(R_K, P_K, 1572864, S_T + 1, S_T + 2)
    srd(R_V, P_V, 1572864, S_T + 1, S_T + 2)
    A("s_mul_i32 s%d, s%d, 3072" % (S_RST, S_WAVE))
    A("s_mov_b32 s%d, s%d" % (S_ROFF, S_RST))

    def ring_issue(slot, srdr):
        for jj in range(3):
            r = RING0 + slot * 12 + jj * 4
            A("buffer_load_dwordx4 %s, v%d, %s, s%d offen offset:%d nt" % (vr(r, 4), V_ROFF, sr(srdr, 4), S_ROFF, jj * 128))
        A("s_add_u32 s%d, s%d, 24576" % (S_ROFF, S_ROFF))

    g.c("---- static loads: c, w_mod (producers), wq ----")
    V_WM, V_WQ, V_C = 16, 36, 56
    l_nprod = g.newlabel("L_nprod")
    A("s_cmp_ge_u32 s%d, 120" % S_PM); A("s_cbranch_scc1 %s" % l_nprod)
    srd(R_T0, P_C, 1280); srd(R_T1, P_WMOD, 4915200)
    A("v_lshrrev_b32 v3, 2, v0")
    A("v_lshlrev_b32 v4, 1, v3")
    for i in range(5):
        A("buffer_load_ushort v%d, v4, %s, 0 offen offset:%d" % (V_C + i, sr(R_T0, 4), 256 * i))
    A("v_mul_u32_u24 v4, 7680, v3")
    A("v_and_b32 v5, 3, v0")
    A("v_lshl_add_u32 v4, v5, 4, v4")
    A("s_lshl_b32 s%d, s%d, 6" % (S_T, S_PM))
    for i in range(5):
        A("buffer_load_dwordx4 %s, v4, %s, s%d offen" % (vr(V_WM + 4 * i, 4), sr(R_T1, 4), S_T))
        if i < 4: A("s_add_u32 s%d, s%d, 983040" % (S_T, S_T))
    g.label(l_nprod)
    srd(R_T2, P_WQ, 7864320)
    A("v_and_b32 v3, 15, v%d" % V_LANE)
    A("s_mul_i32 s%d, s%d, 80" % (S_T, S_WAVE))
    A("v_add_u32 v3, s%d, v3" % S_T)
    A("v_mul_u32_u24 v4, 12288, v3")
    A("v_lshrrev_b32 v5, 4, v%d" % V_LANE)
    A("v_lshl_add_u32 v4, v5, 4, v4")
    A("v_cmp_eq_u32 vcc, 3, v5")
    A("v_mov_b32 v6, 0x7ffffff0")
    nop(0)
    A("v_cndmask_b32 v4, v4, v6, vcc")
    A("s_mul_i32 s%d, s%d, 384" % (S_T, S_HEAD)); A("s_mul_i32 s%d, s%d, 48" % (S_T + 1, S_SPLIT))
    A("s_add_u32 s%d, s%d, s%d" % (S_T, S_T, S_T + 1))
    for i in range(5):
        A("buffer_load_dwordx4 %s, v4, %s, s%d offen" % (vr(V_WQ + 4 * i, 4), sr(R_T2, 4), S_T))
        if i < 4: A("s_add_u32 s%d, s%d, 196608" % (S_T, S_T))
    l_w0a = g.newlabel("L_w0a"); l_w0a_end = g.newlabel("L_w0a_end")
    A("s_cmp_eq_u32 s%d, 0" % S_WAVE); A("s_cbranch_scc1 %s" % l_w0a)
    for s in range(NSLOT): ring_issue(s, R_K)
    A("s_branch %s" % l_w0a_end)
    g.label(l_w0a)
    g.c("wave 0: x loads (v64..68), clears")
    A("v_lshlrev_b32 v3, 2, v%d" % V_LANE)
    for k in range(5):
        A("global_load_dword v%d, v3, %s offset:%d" % (64 + k, sr(P_X, 2), 256 * k))
    A("s_lshl_b32 s%d, s%d, 3" % (S_T, S_HEAD)); A("s_add_u32 s%d, s%d, s%d" % (S_T, S_T, S_SPLIT))
    A("s_mul_i32 s%d, s%d, 768" % (S_T + 1, S_T)); A("s_add_u32 s%d, s%d, %d" % (S_T + 1, S_T + 1, WS_OP))
    A("v_lshlrev_b32 v4, 4, v%d" % V_LANE)
    A("v_add_u32 v5, s%d, v4" % (S_T + 1))
    A("s_mul_i32 s%d, s%d, 48" % (S_T + 1, S_T)); A("s_add_u32 s%d, s%d, %d" % (S_T + 1, S_T + 1, WS_Q - 48 * 16))
    A("v_add_u32 v6, s%d, v4" % (S_T + 1))
    A("v_cmp_le_u32 vcc, 48, v%d" % V_LANE); nop(1); A("v_cndmask_b32 v5, v5, v6, vcc")
    A("s_lshl_b32 s%d, s%d, 6" % (S_T + 1, S_T)); A("s_add_u32 s%d, s%d, %d" % (S_T + 1, S_T + 1, WS_ML - 51 * 16))
    A("v_add_u32 v6, s%d, v4" % (S_T + 1))
    A("v_cmp_le_u32 vcc, 51, v%d" % V_LANE); nop(1); A("v_cndmask_b32 v5, v5, v6, vcc")
    A("s_mul_i32 s%d, s%d, 2560" % (S_T + 1, S_KG)); A("s_lshl_b32 s%d, s%d, 6" % (S_T + 2, S_CG))
    A("s_add_u32 s%d, s%d, s%d" % (S_T + 1, S_T + 1, S_T + 2)); A("s_add_u32 s%d, s%d, %d" % (S_T + 1, S_T + 1, WS_AP - 55 * 16))
    A("v_add_u32 v6, s%d, v4" % (S_T + 1))
    A("v_cmp_le_u32 vcc, 55, v%d" % V_LANE); nop(1); A("v_cndmask_b32 v5, v5, v6, vcc")
    A("s_lshl_b32 s%d, s%d, 5" % (S_T + 1, S_R2)); A("s_add_u32 s%d, s%d, %d" % (S_T + 1, S_T + 1, WS_ACT - 59 * 16))
    A("v_add_u32 v6, s%d, v4" % (S_T + 1))
    A("v_cmp_le_u32 vcc, 59, v%d" % V_LANE); nop(1); A("v_cndmask_b32 v5, v5, v6, vcc")
    for k in range(4): A("v_mov_b32 v%d, -1" % (8 + k))
    A("v_cmp_gt_u32 vcc, 61, v%d" % V_LANE)
    lm = mask_begin(4)
    A("global_store_dwordx4 v5, v[8:11], %s sc1" % sr(P_WS, 2))
    mask_end(lm, 4)
    g.label(l_w0a_end)

    g.c("---- P1: mod producer ----")
    l_np1 = g.newlabel("L_np1")
    A("s_cmp_ge_u32 s%d, 120" % S_PM); A("s_cbranch_scc1 %s" % l_np1)
    lw = g.newlabel("L_w"); lw2 = g.newlabel("L_w")
    A("s_cmp_eq_u32 s%d, 0" % S_WAVE); A("s_cbranch_scc1 %s" % lw)
    A("s_waitcnt vmcnt(53)"); A("s_branch %s" % lw2)
    g.label(lw); A("s_waitcnt vmcnt(11)"); g.label(lw2)
    ACC = list(range(4, 12))
    for k in range(8): A("v_mov_b32 v%d, 0" % ACC[k])
    for i in range(5):
        A("v_lshlrev_b32 v12, 16, v%d" % (V_C + i))
        silu(61, 12, 13, 14, 15)
        A("v_cvt_pk_bf16_f32 v61, v61, v61")
        A("v_and_b32 v62, 0xffff0000, v61")
        A("v_lshrrev_b32 v61, 16, v61")
        for k in range(4):
            A("v_dot2c_f32_bf16 v%d, v%d, v61" % (ACC[2 * k], V_WM + 4 * i + k))
            A("v_dot2c_f32_bf16 v%d, v%d, v62" % (ACC[2 * k + 1], V_WM + 4 * i + k))
    dpp_steps(ACC, ["row_ror:4", "row_ror:8"])
    A("v_lshrrev_b32 v12, 4, v%d" % V_LANE)
    A("s_lshl_b32 s%d, s%d, 2" % (S_T, S_WAVE))
    A("v_add_u32 v12, s%d, v12" % S_T)
    A("v_lshlrev_b32 v12, 7, v12")
    A("v_and_b32 v13, 3, v%d" % V_LANE)
    A("v_lshl_add_u32 v12, v13, 5, v12")
    A("v_and_b32 v13, 15, v%d" % V_LANE)
    A("v_cmp_gt_u32 vcc, 4, v13")
    lm = mask_begin(4)
    A("ds_write_b128 v12, v[4:7] offset:%d" % L_MODP)
    A("ds_write_b128 v12, v[8:11] offset:%d" % (L_MODP + 16))
    mask_end(lm, 4)
    A("s_waitcnt lgkmcnt(0)")
    A("s_barrier")
    l0 = if_wave0()
    A("v_and_b32 v12, 31, v%d" % V_LANE)
    A("v_lshrrev_b32 v13, 5, v%d" % V_LANE)
    A("v_lshlrev_b32 v13, 11, v13")
    A("v_lshl_add_u32 v12, v12, 2, v13")
    for k in range(16):
        A("ds_read_b32 v%d, v12 offset:%d" % (80 + k, L_MODP + 128 * k))
    A("s_waitcnt lgkmcnt(0)")
    for st in (8, 4, 2, 1):
        for k in range(st):
            A("v_add_f32 v%d, v%d, v%d" % (80 + k, 80 + k, 80 + k + st))
    A("v_mov_b32 v81, v80"); nop(1)
    A("v_permlane32_swap_b32 v80, v81"); nop(1)
    A("v_add_f32 v80, v80, v81")
    rne(80, 80)
    A("v_and_b32 v12, 31, v%d" % V_LANE)
    A("s_lshl_b32 s%d, s%d, 7" % (S_T, S_PM))
    A("v_lshl_add_u32 v12, v12, 2, s%d" % S_T)
    A("v_cmp_gt_u32 vcc, 32, v%d" % V_LANE)
    lm = mask_begin(4)
    A("global_store_dword v12, v80, %s offset:%d sc1" % (sr(P_WS, 2), WS_MOD))
    mask_end(lm, 4)
    g.label(l0)
    g.label(l_np1)

    g.c("---- wave 0: flag + LN1 + h ----")
    l0 = if_wave0()
    A("s_waitcnt vmcnt(0)")
    A("v_mov_b32 v3, s2"); A("v_mov_b32 v4, 1")
    A("v_cmp_eq_u32 vcc, 0, v%d" % V_LANE)
    lm = mask_begin(4)
    A("global_store_byte v3, v4, %s sc1" % sr(P_DBG, 2))
    mask_end(lm, 4)
    for k in range(5):
        A("v_lshlrev_b32 v%d, 16, v%d" % (70 + 2 * k, 64 + k))
        A("v_and_b32 v%d, 0xffff0000, v%d" % (71 + 2 * k, 64 + k))
    def ln_stats_wave(xs, t):
        A("v_add_f32 v%d, v%d, v%d" % (t, xs[0], xs[1]))
        for r in xs[2:]: A("v_add_f32 v%d, v%d, v%d" % (t, t, r))
        allreduce64(t, t + 2)
        A("v_mul_f32 v%d, 0x3acccccd, v%d" % (t, t))
        A("v_sub_f32 v%d, v%d, v%d" % (t + 3, xs[0], t))
        A("v_mul_f32 v%d, v%d, v%d" % (t + 1, t + 3, t + 3))
        for r in xs[1:]:
            A("v_sub_f32 v%d, v%d, v%d" % (t + 3, r, t))
            A("v_fmac_f32 v%d, v%d, v%d" % (t + 1, t + 3, t + 3))
        allreduce64(t + 1, t + 2)
        A("v_mul_f32 v%d, 0x3acccccd, v%d" % (t + 1, t + 1))
        rne(t, t); rne(t + 1, t + 1)
        A("v_add_f32 v%d, 0x3727c5ac, v%d" % (t + 1, t + 1))
        rne(t + 1, t + 1)
        A("v_sqrt_f32 v%d, v%d" % (t + 2, t + 1)); nop(0)
        A("v_rcp_f32 v%d, v%d" % (t + 3, t + 2))
        A("v_fma_f32 v%d, -v%d, v%d, v%d" % (t + 4, t + 2, t + 2, t + 1))
        A("v_mul_f32 v%d, 0.5, v%d" % (t + 3, t + 3))
        A("v_fma_f32 v%d, v%d, v%d, v%d" % (t + 1, t + 4, t + 3, t + 2))
        rne(t + 1, t + 1)
    XS = list(range(70, 80))
    ln_stats_wave(XS, 90)
    for r in XS:
        A("v_sub_f32 v%d, v%d, v90" % (r, r)); rne(r, r)
        div(92, r, 91, 93, 94); rne(r, 92)
    A("v_lshlrev_b32 v3, 2, v%d" % V_LANE)
    l = spin_begin()
    A("global_load_dword v4, v3, %s sc1" % sr(P_DBG, 2))
    A("s_waitcnt vmcnt(0)")
    A("v_cmp_ne_u32 vcc, 0x01010101, v4")
    spin_end(l, 1)
    A("v_lshlrev_b32 v3, 3, v%d" % V_LANE)
    for k in range(5):
        A("global_load_dwordx2 %s, v3, %s offset:%d sc1" % (vr(100 + 2 * k, 2), sr(P_WS, 2), WS_MOD + 512 * k))
    wsbase(10, WS_MOD + 2560)
    for k in range(5):
        A("global_load_dwordx2 %s, v3, %s offset:%d sc1" % (vr(110 + 2 * k, 2), sr(10, 2), 512 * k))
    A("s_waitcnt vmcnt(0)")
    def modulate(lnr, cr, sr_, t):
        A("v_add_f32 v%d, 1.0, v%d" % (t, cr)); rne(t, t)
        A("v_mul_f32 v%d, v%d, v%d" % (lnr, lnr, t)); rne(lnr, lnr)
        A("v_add_f32 v%d, v%d, v%d" % (lnr, lnr, sr_)); rne(lnr, lnr)
    for e in range(10):
        modulate(70 + e, 110 + e, 100 + e, 92)
    A("v_lshlrev_b32 v3, 2, v%d" % V_LANE)
    for k in range(5):
        A("v_lshrrev_b32 v92, 16, v%d" % (70 + 2 * k))
        A("v_or_b32 v92, v92, v%d" % (71 + 2 * k))
        A("ds_write_b32 v3, v92 offset:%d" % (L_H + 256 * k))
    A("s_waitcnt lgkmcnt(0)")
    g.label(l0)
    A("s_barrier")

    g.c("---- P3: q partial ----")
    A("s_waitcnt vmcnt(48)")
    A("v_and_b32 v3, 15, v%d" % V_LANE)
    A("s_mul_i32 s%d, s%d, 80" % (S_T, S_WAVE))
    A("v_add_u32 v3, s%d, v3" % S_T)
    A("v_lshlrev_b32 v3, 1, v3")
    for i in range(5):
        A("ds_read_u16 v%d, v3 offset:%d" % (V_C + i, L_H + 32 * i))
    for k in range(8): A("v_mov_b32 v%d, 0" % ACC[k])
    A("s_waitcnt lgkmcnt(0)")
    for i in range(5):
        A("v_lshlrev_b32 v62, 16, v%d" % (V_C + i))
        for k in range(4):
            A("v_dot2c_f32_bf16 v%d, v%d, v%d" % (ACC[2 * k], V_WQ + 4 * i + k, V_C + i))
            A("v_dot2c_f32_bf16 v%d, v%d, v62" % (ACC[2 * k + 1], V_WQ + 4 * i + k))
    dpp_steps(ACC, ["quad_perm:[1,0,3,2]", "quad_perm:[2,3,0,1]", "row_half_mirror", "row_mirror"])
    A("v_lshrrev_b32 v12, 4, v%d" % V_LANE)
    A("v_lshlrev_b32 v12, 5, v12")
    A("s_mul_i32 s%d, s%d, 96" % (S_T, S_WAVE))
    A("v_add_u32 v12, s%d, v12" % S_T)
    A("v_and_b32 v13, 0x2f, v%d" % V_LANE)
    A("v_cmp_eq_u32 vcc, 0, v13")
    A("v_cmp_eq_u32 %s, 32, v%d" % (sr(6, 2), V_LANE))
    A("s_or_b64 vcc, vcc, %s" % sr(6, 2))
    lm = mask_begin(4)
    A("ds_write_b128 v12, v[4:7] offset:%d" % L_QP)
    A("ds_write_b128 v12, v[8:11] offset:%d" % (L_QP + 16))
    mask_end(lm, 4)
    A("s_waitcnt lgkmcnt(0)")
    A("s_barrier")
    l0 = if_wave0()
    A("v_lshlrev_b32 v3, 3, v%d" % V_LANE)
    A("v_cmp_gt_u32 vcc, 12, v%d" % V_LANE)
    lm = mask_begin(4)
    for w in range(8):
        A("ds_read_b64 %s, v3 offset:%d" % (vr(80 + 2 * w, 2), L_QP + 96 * w))
    A("s_waitcnt lgkmcnt(0)")
    for st in (4, 2, 1):
        for k in range(st):
            A("v_add_f32 v%d, v%d, v%d" % (80 + 2 * k, 80 + 2 * k, 80 + 2 * (k + st)))
            A("v_add_f32 v%d, v%d, v%d" % (81 + 2 * k, 81 + 2 * k, 81 + 2 * (k + st)))
    A("v_cvt_pk_bf16_f32 v80, v80, v81")
    A("s_lshl_b32 s%d, s%d, 3" % (S_T, S_HEAD)); A("s_add_u32 s%d, s%d, s%d" % (S_T, S_T, S_SPLIT))
    A("s_mul_i32 s%d, s%d, 48" % (S_T, S_T))
    A("v_lshl_add_u32 v3, v%d, 2, s%d" % (V_LANE, S_T))
    A("v_add_u32 v3, %d, v3" % WS_Q)
    A("global_store_dword v3, v80, %s sc1" % sr(P_WS, 2))
    mask_end(lm, 4)
    A("s_mul_i32 s%d, s%d, 384" % (S_T, S_HEAD)); A("s_add_u32 s%d, s%d, %d" % (S_T, S_T, WS_Q))
    A("v_min_u32 v3, 23, v%d" % V_LANE)
    A("v_lshl_add_u32 v3, v3, 4, s%d" % S_T)
    l = spin_begin()
    A("global_load_dwordx4 v[80:83], v3, %s sc1" % sr(P_WS, 2))
    A("s_waitcnt vmcnt(0)")
    A("v_cmp_eq_u32 vcc, -1, v80")
    for k in range(1, 4):
        A("v_cmp_eq_u32 %s, -1, v%d" % (sr(6, 2), 80 + k)); A("s_or_b64 vcc, vcc, %s" % sr(6, 2))
    spin_end(l, 1)
    A("v_lshlrev_b32 v3, 4, v%d" % V_LANE)
    A("v_cmp_gt_u32 vcc, 24, v%d" % V_LANE)
    lm = mask_begin(4)
    A("ds_write_b128 v3, v[80:83] offset:%d" % L_Q)
    mask_end(lm, 4)
    A("s_waitcnt lgkmcnt(0)")
    for s in range(NSLOT): ring_issue(s, R_K)
    g.label(l0)
    A("s_barrier")
    A("v_and_b32 v3, 7, v%d" % V_LANE)
    A("v_lshlrev_b32 v3, 4, v3")
    for k in range(3):
        A("ds_read_b128 %s, v3 offset:%d" % (vr(V_Q + 4 * k, 4), L_Q + 128 * k))
    A("s_waitcnt lgkmcnt(0)")

    g.c("---- K pass ----")
    for k in range(4): A("s_mov_b32 s%d, s%d" % (R_CUR + k, R_K + k))
    A("s_mov_b32 s%d, 0" % S_RND)
    g.label("L_kloop")
    ln = g.newlabel("L_kn")
    A("s_cmp_eq_u32 s%d, 3" % S_RND); A("s_cbranch_scc0 %s" % ln)
    A("s_mov_b32 s%d, s%d" % (R_CUR, R_V)); A("s_mov_b32 s%d, s%d" % (R_CUR + 1, R_V + 1))
    A("s_mov_b32 s%d, s%d" % (S_ROFF, S_RST))
    A("s_cmp_eq_u32 s%d, 0" % S_WAVE); A("s_cbranch_scc0 %s" % ln)
    A("s_mov_b32 s%d, 0" % (R_CUR + 2))
    g.label(ln)
    T = 36
    COL = 48
    for grp in range(4):
        A("s_waitcnt vmcnt(36)")
        for tt in range(4):
            base = RING0 + (grp * 4 + tt) * 12
            for ch in range(3):
                A("v_dot2_f32_bf16 v%d, v%d, v%d, 0" % (T + 3 * tt + ch, base + 4 * ch, V_Q + 4 * ch))
        for k in range(1, 4):
            for tt in range(4):
                base = RING0 + (grp * 4 + tt) * 12
                for ch in range(3):
                    A("v_dot2c_f32_bf16 v%d, v%d, v%d" % (T + 3 * tt + ch, base + 4 * ch + k, V_Q + 4 * ch + k))
        for tt in range(4): ring_issue(grp * 4 + tt, R_CUR)
        for tt in range(4): A("v_add_f32 v%d, v%d, v%d" % (T + 3 * tt, T + 3 * tt, T + 3 * tt + 1))
        for tt in range(4): A("v_add_f32 v%d, v%d, v%d" % (T + 3 * tt, T + 3 * tt, T + 3 * tt + 2))
        regs = [T + 3 * tt for tt in range(4)]
        for ctl in ["quad_perm:[1,0,3,2]", "quad_perm:[2,3,0,1]", "row_half_mirror"]:
            dpp_add(regs, ctl)
        for tt in range(4):
            j = (grp * 4 + tt) & 7
            A("v_cndmask_b32 v%d, v%d, v%d, %s" % (COL, COL, T + 3 * tt, sr(S_MASK + 2 * j, 2)))
        if grp & 1:
            rne(COL + 1, COL)
            A("v_mul_f32 v%d, 0x3d93cd3a, v%d" % (COL + 1, COL + 1))
            rne(COL + 1, COL + 1)
            A("v_mov_b32 v%d, v%d" % (50 + (grp >> 1), COL + 1))
    for k in range(6): A("v_mov_b32 v%d, v%d" % (V_S + k, V_S + k + 2))
    A("v_mov_b32 v%d, v50" % (V_S + 6)); A("v_mov_b32 v%d, v51" % (V_S + 7))
    A("s_add_u32 s%d, s%d, 1" % (S_RND, S_RND))
    A("s_cmp_lt_u32 s%d, 4" % S_RND); A("s_cbranch_scc1 L_kloop")

    g.c("---- wave (m,l) publish ----")
    A("v_max3_f32 v36, v%d, v%d, v%d" % (V_S, V_S + 1, V_S + 2))
    A("v_max3_f32 v36, v36, v%d, v%d" % (V_S + 3, V_S + 4))
    A("v_max3_f32 v36, v36, v%d, v%d" % (V_S + 5, V_S + 6))
    A("v_max_f32 v36, v36, v%d" % (V_S + 7))
    allreduce64(36, 38, "v_max_f32")
    A("v_mov_b32 v37, 0")
    for k in range(8):
        A("v_sub_f32 v38, v%d, v36" % (V_S + k))
        A("v_mul_f32 v38, 0x3fb8aa3b, v38")
        A("v_exp_f32 v38, v38"); nop(0)
        A("v_add_f32 v37, v37, v38")
    allreduce64(37, 38)
    A("s_lshl_b32 s%d, s%d, 3" % (S_T, S_HEAD)); A("s_add_u32 s%d, s%d, s%d" % (S_T, S_T, S_SPLIT))
    A("s_lshl_b32 s%d, s%d, 3" % (S_T, S_T)); A("s_add_u32 s%d, s%d, s%d" % (S_T, S_T, S_WAVE))
    A("s_lshl_b32 s%d, s%d, 3" % (S_T, S_T)); A("s_add_u32 s%d, s%d, %d" % (S_T, S_T, WS_ML))
    A("v_mov_b32 v3, s%d" % S_T)
    A("v_cmp_eq_u32 vcc, 0, v%d" % V_LANE)
    lm = mask_begin(4)
    A("global_store_dwordx2 v3, v[36:37], %s sc1" % sr(P_WS, 2))
    mask_end(lm, 4)
    l0 = if_wave0()
    A("s_lshl_b32 s%d, s%d, 9" % (S_T, S_HEAD)); A("s_add_u32 s%d, s%d, %d" % (S_T, S_T, WS_ML))
    A("v_lshl_add_u32 v3, v%d, 3, s%d" % (V_LANE, S_T))
    l = spin_begin()
    A("global_load_dwordx2 v[38:39], v3, %s sc1" % sr(P_WS, 2))
    A("s_waitcnt vmcnt(0)")
    A("v_cmp_eq_u32 vcc, -1, v38")
    A("v_cmp_eq_u32 %s, -1, v39" % sr(6, 2)); A("s_or_b64 vcc, vcc, %s" % sr(6, 2))
    spin_end(l, 1)
    A("s_mov_b32 s%d, s%d" % (S_ROFF, S_RST))
    for s in range(NSLOT): ring_issue(s, R_V)
    A("v_mov_b32 v40, v38")
    allreduce64(40, 41, "v_max_f32")
    A("v_sub_f32 v41, v38, v40")
    A("v_mul_f32 v41, 0x3fb8aa3b, v41")
    A("v_exp_f32 v41, v41"); nop(0)
    A("v_mul_f32 v41, v41, v39")
    allreduce64(41, 42)
    A("v_mov_b32 v42, 1.0")
    div(43, 42, 41, 44, 45)
    A("v_mov_b32 v41, v43")
    A("v_mov_b32 v3, 0")
    A("v_cmp_eq_u32 vcc, 0, v%d" % V_LANE)
    lm = mask_begin(4)
    A("ds_write_b64 v3, v[40:41] offset:%d" % L_ML)
    mask_end(lm, 4)
    A("s_waitcnt lgkmcnt(0)")
    g.label(l0)
    A("s_barrier")
    A("v_mov_b32 v3, 0")
    A("ds_read_b64 v[40:41], v3 offset:%d" % L_ML)
    A("s_waitcnt lgkmcnt(0)")
    for k in range(8):
        A("v_sub_f32 v38, v%d, v40" % (V_S + k))
        A("v_mul_f32 v38, 0x3fb8aa3b, v38")
        A("v_exp_f32 v38, v38"); nop(0)
        A("v_mul_f32 v38, v38, v41")
        A("v_cvt_pk_bf16_f32 v38, v38, v38")
        A("v_lshrrev_b32 v%d, 16, v38" % (V_S + k))
    for k in range(24): A("v_mov_b32 v%d, 0" % (V_ACC + k))

    g.c("---- V pass ----")
    for k in range(4): A("s_mov_b32 s%d, s%d" % (R_CUR + k, R_V + k))
    PL, PH = 60, 61
    def v_round(final):
        for grp in range(4):
            if not final:
                A("s_waitcnt vmcnt(36)")
            else:
                A("s_waitcnt vmcnt(%d)" % [36, 34, 22, 10][grp])
            for tt in range(4):
                i = grp * 4 + tt
                sreg = V_S + (i >> 3); j = i & 7
                pl = PL + 2 * (tt & 1); ph = pl + 1
                A("v_mov_b32_dpp v%d, v%d row_newbcast:%d row_mask:0xf bank_mask:0x3" % (pl, sreg, j))
                A("v_mov_b32_dpp v%d, v%d row_newbcast:%d row_mask:0xf bank_mask:0xc" % (pl, sreg, j + 8))
                A("v_lshlrev_b32 v%d, 16, v%d" % (ph, pl))
                base = RING0 + i * 12
                for k in range(12):
                    A("v_dot2c_f32_bf16 v%d, v%d, v%d" % (V_ACC + 2 * k, base + k, pl))
                    A("v_dot2c_f32_bf16 v%d, v%d, v%d" % (V_ACC + 2 * k + 1, base + k, ph))
            if not final:
                for tt in range(4): ring_issue(grp * 4 + tt, R_CUR)
            elif grp == 0:
                tail_weight_loads()
        if not final:
            for k in range(6): A("v_mov_b32 v%d, v%d" % (V_S + k, V_S + k + 2))
    TW1, TW2, TW3 = 64, 80, 92
    def tail_weight_loads():
        g.c("tail weights into freed ring slots")
        srd(R_T0, P_WO, 7864320)
        ll = g.newlabel("L_tw")
        A("s_cmp_lt_u32 s%d, 240" % S_R1); A("s_cbranch_scc1 %s" % ll); A("s_mov_b32 s%d, 0" % (R_T0 + 2)); g.label(ll)
        A("v_lshrrev_b32 v3, 1, v0")
        A("v_mul_u32_u24 v3, 1280, v3")
        A("v_and_b32 v4, 1, v0")
        A("v_lshl_add_u32 v3, v4, 4, v3")
        A("s_mul_i32 s%d, s%d, 1310720" % (S_T, S_KG)); A("s_lshl_b32 s%d, s%d, 5" % (S_T + 1, S_CG))
        A("s_add_u32 s%d, s%d, s%d" % (S_T, S_T, S_T + 1))
        for i in range(4):
            A("buffer_load_dwordx4 %s, v3, %s, s%d offen" % (vr(TW1 + 4 * i, 4), sr(R_T0, 4), S_T))
            if i < 3: A("s_add_u32 s%d, s%d, 327680" % (S_T, S_T))
        srd(R_T1, P_WG, 1966080)
        ll = g.newlabel("L_tw")
        A("s_cmp_lt_u32 s%d, 4" % S_WAVE); A("s_cbranch_scc1 %s" % ll)
        A("s_mov_b32 s%d, s%d" % (R_T1, P_WU)); A("s_mov_b32 s%d, s%d" % (R_T1 + 1, P_WU + 1)); g.label(ll)
        ll = g.newlabel("L_tw")
        A("s_cmp_lt_u32 s%d, 192" % S_R2); A("s_cbranch_scc1 %s" % ll); A("s_mov_b32 s%d, 0" % (R_T1 + 2)); g.label(ll)
        A("v_and_b32 v3, 255, v0")
        A("v_mul_u32_u24 v3, 3072, v3")
        A("s_lshl_b32 s%d, s%d, 4" % (S_T, S_R2))
        for i in range(3):
            A("buffer_load_dwordx4 %s, v3, %s, s%d offen" % (vr(TW2 + 4 * i, 4), sr(R_T1, 4), S_T))
            if i < 2: A("s_add_u32 s%d, s%d, 786432" % (S_T, S_T))
        srd(R_T2, P_WD, 1966080)
        ll = g.newlabel("L_tw")
        A("s_cmp_lt_u32 s%d, 80" % S_R2); A("s_cbranch_scc1 %s" % ll); A("s_mov_b32 s%d, 0" % (R_T2 + 2)); g.label(ll)
        A("v_mul_u32_u24 v3, 1280, v0")
        A("s_lshl_b32 s%d, s%d, 4" % (S_T, S_R2))
        for i in range(3):
            A("buffer_load_dwordx4 %s, v3, %s, s%d offen" % (vr(TW3 + 4 * i, 4), sr(R_T2, 4), S_T))
            if i < 2: A("s_add_u32 s%d, s%d, 655360" % (S_T, S_T))
    A("s_mov_b32 s%d, 0" % S_RND)
    g.label("L_vloop")
    ln = g.newlabel("L_vn")
    A("s_cmp_eq_u32 s%d, 2" % S_RND); A("s_cbranch_scc0 %s" % ln)
    g.label(ln)
    v_round(False)
    A("s_add_u32 s%d, s%d, 1" % (S_RND, S_RND))
    A("s_cmp_lt_u32 s%d, 3" % S_RND); A("s_cbranch_scc1 L_vloop")
    v_round(True)

    g.c("---- o_part ----")
    regs = list(range(V_ACC, V_ACC + 24))
    regs = swap_reduce(regs, 32)
    regs = swap_reduce(regs, 16)
    nop(1)
    dpp_add(regs, "row_ror:8")
    A("v_lshrrev_b32 v3, 4, v%d" % V_LANE)
    A("v_mul_u32_u24 v3, 6, v3")
    A("v_and_b32 v4, 7, v%d" % V_LANE)
    A("v_lshlrev_b32 v4, 5, v4")
    A("s_mul_i32 s%d, s%d, 768" % (S_T, S_WAVE))
    A("v_add_u32 v4, s%d, v4" % S_T)
    A("v_and_b32 v5, 8, v%d" % V_LANE)
    A("v_cmp_eq_u32 vcc, 0, v5")
    lm = mask_begin(4)
    for n in range(6):
        A("v_add_u32 v5, %d, v3" % n)
        A("v_lshrrev_b32 v6, 3, v5")
        A("v_and_b32 v5, 7, v5")
        A("v_lshlrev_b32 v6, 8, v6")
        A("v_lshl_add_u32 v5, v5, 2, v6")
        A("v_add_u32 v5, v5, v4")
        A("ds_write_b32 v5, v%d offset:%d" % (regs[n], L_OW))
    mask_end(lm, 4)
    A("s_waitcnt lgkmcnt(0)")
    A("s_barrier")
    l0 = if_wave0()
    A("v_lshlrev_b32 v3, 4, v%d" % V_LANE)
    A("v_cmp_gt_u32 vcc, 48, v%d" % V_LANE)
    lm = mask_begin(4)
    for w in range(8):
        A("ds_read_b128 %s, v3 offset:%d" % (vr(112 + 4 * w, 4), L_OW + 768 * w))
    A("s_waitcnt lgkmcnt(0)")
    for st in (4, 2, 1):
        for k in range(st):
            for e in range(4):
                A("v_add_f32 v%d, v%d, v%d" % (112 + 4 * k + e, 112 + 4 * k + e, 112 + 4 * (k + st) + e))
    A("s_lshl_b32 s%d, s%d, 3" % (S_T, S_HEAD)); A("s_add_u32 s%d, s%d, s%d" % (S_T, S_T, S_SPLIT))
    A("s_mul_i32 s%d, s%d, 768" % (S_T, S_T)); A("s_add_u32 s%d, s%d, %d" % (S_T, S_T, WS_OP))
    A("v_add_u32 v3, s%d, v3" % S_T)
    A("global_store_dwordx4 v3, v[112:115], %s sc1" % sr(P_WS, 2))
    mask_end(lm, 4)
    g.label(l0)

    g.c("---- tail misc loads ----")
    A("v_and_b32 v3, 255, v0")
    A("v_lshlrev_b32 v3, 2, v3")
    wsbase(10, WS_MOD + 3 * 2560); wsbase(12, WS_MOD + 4 * 2560)
    A("v_min_u32 v4, 0x1fc, v3")
    for i in range(3):
        va = 3 if i < 2 else 4
        A("global_load_dword v%d, v%d, %s offset:%d sc1" % (104 + 2 * i, va, sr(10, 2), 1024 * i))
        A("global_load_dword v%d, v%d, %s offset:%d sc1" % (105 + 2 * i, va, sr(12, 2), 1024 * i))
    A("v_lshrrev_b32 v3, 1, v0")
    A("v_min_u32 v3, 159, v3")
    A("v_lshlrev_b32 v4, 4, v3")
    A("v_add_u32 v4, %d, v4" % (WS_MOD + 2 * 2560))
    A("global_load_dwordx4 v[144:147], v4, %s sc1" % sr(P_WS, 2))
    A("v_lshlrev_b32 v4, 3, v3")
    A("global_load_dwordx2 v[148:149], v4, %s" % sr(P_X, 2))
    A("s_min_u32 s%d, s%d, 79" % (S_T, S_R2)); A("s_lshl_b32 s%d, s%d, 5" % (S_T, S_T))
    A("v_and_b32 v4, 7, v0")
    A("v_lshl_add_u32 v4, v4, 2, s%d" % S_T)
    A("v_add_u32 v4, %d, v4" % (WS_MOD + 5 * 2560))
    A("global_load_dword v150, v4, %s sc1" % sr(P_WS, 2))

    g.c("---- hop A ----")
    l_no1 = g.newlabel("L_no1")
    A("s_cmp_ge_u32 s%d, 240" % S_R1); A("s_cbranch_scc1 %s" % l_no1)
    l0 = if_wave0()
    A("s_lshl_b32 s%d, s%d, 4" % (S_T, S_KG)); A("s_mul_i32 s%d, s%d, 43691" % (S_T, S_T)); A("s_lshr_b32 s%d, s%d, 17" % (S_T, S_T))
    A("s_lshl_b32 s%d, s%d, 3" % (S_T, S_T))
    A("v_min_u32 v3, 47, v%d" % V_LANE)
    A("v_add_u32 v3, s%d, v3" % S_T)
    A("v_min_u32 v3, 255, v3")
    A("v_mul_u32_u24 v3, 768, v3")
    A("v_add_u32 v3, %d, v3" % (WS_OP + 764))
    l = spin_begin()
    A("global_load_dword v4, v3, %s sc1" % sr(P_WS, 2))
    A("s_waitcnt vmcnt(0)")
    A("v_cmp_eq_u32 vcc, -1, v4")
    spin_end(l, 2)
    g.label(l0)
    A("s_barrier")
    A("v_lshrrev_b32 v3, 1, v0")
    A("s_lshl_b32 s%d, s%d, 8" % (S_T, S_KG))
    A("v_add_u32 v3, s%d, v3" % S_T)
    A("s_mov_b32 s%d, 43691" % (S_T + 1))
    A("v_mul_lo_u32 v4, v3, s%d" % (S_T + 1))
    A("v_lshrrev_b32 v4, 21, v4")
    A("v_mul_u32_u24 v5, 48, v4")
    A("v_sub_u32 v5, v3, v5")
    A("v_lshlrev_b32 v4, 3, v4")
    A("v_and_b32 v6, 1, v0")
    A("v_lshl_add_u32 v4, v6, 2, v4")
    A("v_mul_u32_u24 v4, 768, v4")
    A("v_lshl_add_u32 v4, v5, 4, v4")
    A("v_add_u32 v4, %d, v4" % WS_OP)
    l = spin_begin()
    for s in range(4):
        A("global_load_dwordx4 %s, v4, %s offset:%d sc1" % (vr(152 + 4 * s, 4), sr(P_WS, 2), 768 * s))
    A("s_waitcnt vmcnt(0)")
    A("v_cmp_eq_u32 vcc, -1, v152")
    for k in range(1, 16):
        A("v_cmp_eq_u32 %s, -1, v%d" % (sr(6, 2), 152 + k)); A("s_or_b64 vcc, vcc, %s" % sr(6, 2))
    spin_end(l, 1)
    for e in range(4):
        A("v_add_f32 v%d, v%d, v%d" % (152 + e, 152 + e, 156 + e))
        A("v_add_f32 v%d, v%d, v%d" % (160 + e, 160 + e, 164 + e))
    for e in range(4):
        A("v_add_f32 v%d, v%d, v%d" % (152 + e, 152 + e, 160 + e))
    dpp_add([152, 153, 154, 155], "quad_perm:[1,0,3,2]")
    A("v_cvt_pk_bf16_f32 v156, v152, v153")
    A("v_cvt_pk_bf16_f32 v157, v154, v155")
    A("v_lshrrev_b32 v3, 1, v0")
    A("v_lshlrev_b32 v3, 3, v3")
    A("v_and_b32 v4, 1, v0")
    A("v_cmp_eq_u32 vcc, 0, v4")
    lm = mask_begin(4)
    A("ds_write_b64 v3, v[156:157] offset:%d" % L_O)
    mask_end(lm, 4)
    A("s_waitcnt lgkmcnt(0)")
    A("s_barrier")
    g.c("---- GEMV1 ----")
    A("v_lshrrev_b32 v3, 1, v0")
    A("v_lshlrev_b32 v3, 1, v3")
    for i in range(4):
        A("ds_read_u16 v%d, v3 offset:%d" % (152 + i, L_O + 512 * i))
    for k in range(8): A("v_mov_b32 v%d, 0" % ACC[k])
    A("s_waitcnt lgkmcnt(0)")
    for i in range(4):
        A("v_lshlrev_b32 v156, 16, v%d" % (152 + i))
        for k in range(4):
            A("v_dot2c_f32_bf16 v%d, v%d, v%d" % (ACC[2 * k], TW1 + 4 * i + k, 152 + i))
            A("v_dot2c_f32_bf16 v%d, v%d, v156" % (ACC[2 * k + 1], TW1 + 4 * i + k))
    dpp_steps(ACC, ["quad_perm:[2,3,0,1]", "row_ror:4", "row_ror:8"])
    rg = swap_reduce(ACC, 32); rg = swap_reduce(rg, 16)
    A("v_lshrrev_b32 v12, 4, v%d" % V_LANE)
    A("v_lshlrev_b32 v12, 3, v12")
    A("v_and_b32 v13, 1, v%d" % V_LANE)
    A("v_lshl_add_u32 v12, v13, 5, v12")
    A("s_lshl_b32 s%d, s%d, 6" % (S_T, S_WAVE))
    A("v_add_u32 v12, s%d, v12" % S_T)
    A("v_and_b32 v13, 15, v%d" % V_LANE)
    A("v_cmp_gt_u32 vcc, 2, v13")
    lm = mask_begin(4)
    A("ds_write_b64 v12, v[4:5] offset:%d" % L_RED)
    mask_end(lm, 4)
    A("s_waitcnt lgkmcnt(0)")
    A("s_barrier")
    l0 = if_wave0()
    A("v_lshlrev_b32 v3, 2, v%d" % V_LANE)
    A("v_cmp_gt_u32 vcc, 16, v%d" % V_LANE)
    lm = mask_begin(4)
    for w in range(8):
        A("ds_read_b32 v%d, v3 offset:%d" % (152 + w, L_RED + 64 * w))
    A("s_waitcnt lgkmcnt(0)")
    for st in (4, 2, 1):
        for k in range(st): A("v_add_f32 v%d, v%d, v%d" % (152 + k, 152 + k, 152 + k + st))
    A("s_mul_i32 s%d, s%d, 2560" % (S_T, S_KG)); A("s_lshl_b32 s%d, s%d, 6" % (S_T + 1, S_CG))
    A("s_add_u32 s%d, s%d, s%d" % (S_T, S_T, S_T + 1)); A("s_add_u32 s%d, s%d, %d" % (S_T, S_T, WS_AP))
    A("v_add_u32 v3, s%d, v3" % S_T)
    A("global_store_dword v3, v152, %s sc1" % sr(P_WS, 2))
    mask_end(lm, 4)
    g.label(l0)
    g.label(l_no1)

    A("s_cmp_ge_u32 s%d, 192" % S_R2); A("s_cbranch_scc1 L_done")
    g.c("---- hop B ----")
    A("v_lshrrev_b32 v3, 1, v0")
    A("v_min_u32 v3, 159, v3")
    A("v_lshlrev_b32 v3, 4, v3")
    A("v_and_b32 v4, 1, v0")
    A("v_mul_u32_u24 v4, 7680, v4")
    A("v_add_u32 v3, v3, v4")
    A("v_add_u32 v3, %d, v3" % WS_AP)
    A("v_add_u32 v4, 2560, v3"); A("v_add_u32 v5, 5120, v3")
    l = spin_begin()
    A("global_load_dwordx4 v[152:155], v3, %s sc1" % sr(P_WS, 2))
    A("global_load_dwordx4 v[156:159], v4, %s sc1" % sr(P_WS, 2))
    A("global_load_dwordx4 v[160:163], v5, %s sc1" % sr(P_WS, 2))
    A("s_waitcnt vmcnt(0)")
    A("v_cmp_eq_u32 vcc, -1, v152")
    for k in range(1, 12):
        A("v_cmp_eq_u32 %s, -1, v%d" % (sr(6, 2), 152 + k)); A("s_or_b64 vcc, vcc, %s" % sr(6, 2))
    spin_end(l, 1)
    for e in range(4):
        A("v_add_f32 v%d, v%d, v%d" % (152 + e, 152 + e, 156 + e))
    for e in range(4):
        A("v_add_f32 v%d, v%d, v%d" % (152 + e, 152 + e, 160 + e))
    dpp_add([152, 153, 154, 155], "quad_perm:[1,0,3,2]")
    A("v_lshlrev_b32 v156, 16, v148"); A("v_and_b32 v157, 0xffff0000, v148")
    A("v_lshlrev_b32 v158, 16, v149"); A("v_and_b32 v159, 0xffff0000, v149")
    for e in range(4):
        rne(152 + e, 152 + e)
        A("v_mul_f32 v%d, v%d, v%d" % (152 + e, 152 + e, 144 + e)); rne(152 + e, 152 + e)
        A("v_add_f32 v%d, v%d, v%d" % (152 + e, 152 + e, 156 + e)); rne(152 + e, 152 + e)
    A("v_add_f32 v160, v152, v153"); A("v_add_f32 v161, v154, v155"); A("v_add_f32 v160, v160, v161")
    A("v_mul_f32 v161, v152, v152")
    for e in range(1, 4): A("v_fmac_f32 v161, v%d, v%d" % (152 + e, 152 + e))
    A("v_and_b32 v4, 1, v0")
    A("v_cmp_eq_u32 vcc, 0, v4")
    A("v_mov_b32 v5, 320")
    A("v_cmp_gt_u32 %s, v5, v0" % sr(6, 2))
    A("s_and_b64 vcc, vcc, %s" % sr(6, 2))
    A("v_mov_b32 v4, 0"); nop(0)
    A("v_cndmask_b32 v160, v4, v160, vcc"); A("v_cndmask_b32 v161, v4, v161, vcc")
    A("v_lshrrev_b32 v3, 1, v0"); A("v_lshlrev_b32 v3, 4, v3")
    lm = mask_begin(4)
    A("ds_write_b128 v3, v[152:155] offset:%d" % L_X1)
    mask_end(lm, 4)
    allreduce64(160, 162); allreduce64(161, 162)
    A("s_lshl_b32 s%d, s%d, 3" % (S_T, S_WAVE)); A("v_mov_b32 v3, s%d" % S_T)
    A("v_cmp_eq_u32 vcc, 0, v%d" % V_LANE)
    lm = mask_begin(4)
    A("ds_write_b64 v3, v[160:161] offset:%d" % L_ST)
    mask_end(lm, 4)
    A("s_waitcnt lgkmcnt(0)")
    A("s_barrier")
    A("v_mov_b32 v3, 0")
    for k in range(4):
        A("ds_read_b128 %s, v3 offset:%d" % (vr(152 + 4 * k, 4), L_ST + 16 * k))
    A("v_and_b32 v3, 255, v0"); A("v_lshlrev_b32 v3, 2, v3")
    for i in range(3):
        A("ds_read_b32 v%d, v3 offset:%d" % (170 + i, L_X1 + 1024 * i))
    A("s_waitcnt lgkmcnt(0)")
    for k in range(1, 8):
        A("v_add_f32 v152, v152, v%d" % (152 + 2 * k)); A("v_add_f32 v153, v153, v%d" % (153 + 2 * k))
    A("v_mul_f32 v152, 0x3acccccd, v152")
    A("v_mul_f32 v153, 0x3acccccd, v153")
    A("v_fma_f32 v153, -v152, v152, v153")
    rne(152, 152); rne(153, 153)
    A("v_add_f32 v153, 0x3727c5ac, v153"); rne(153, 153)
    A("v_sqrt_f32 v154, v153"); nop(0)
    A("v_rcp_f32 v155, v154")
    A("v_fma_f32 v156, -v154, v154, v153")
    A("v_mul_f32 v155, 0.5, v155")
    A("v_fma_f32 v153, v156, v155, v154")
    rne(153, 153)
    g.c("---- GEMV2 ----")
    for k in range(8): A("v_mov_b32 v%d, 0" % ACC[k])
    for i in range(3):
        r = 170 + i
        A("v_sub_f32 v%d, v%d, v152" % (r, r)); rne(r, r)
        div(154, r, 153, 155, 156); rne(r, 154)
        modulate(r, 105 + 2 * i, 104 + 2 * i, 154)
        if i == 2:
            A("v_and_b32 v154, 255, v0"); A("v_mov_b32 v155, 0")
            A("v_cmp_gt_u32 vcc, 0x80, v154"); nop(1)
            A("v_cndmask_b32 v%d, v155, v%d, vcc" % (r, r))
        A("v_lshrrev_b32 v154, 16, v%d" % r)
        for k in range(4):
            A("v_dot2c_f32_bf16 v%d, v%d, v154" % (ACC[2 * k], TW2 + 4 * i + k))
            A("v_dot2c_f32_bf16 v%d, v%d, v%d" % (ACC[2 * k + 1], TW2 + 4 * i + k, r))
    dpp_steps(ACC, ["quad_perm:[1,0,3,2]", "quad_perm:[2,3,0,1]", "row_half_mirror", "row_mirror"])
    rg = swap_reduce(ACC, 32); rg = swap_reduce(rg, 16)
    A("v_lshrrev_b32 v12, 4, v%d" % V_LANE)
    A("v_lshlrev_b32 v12, 3, v12")
    A("s_lshl_b32 s%d, s%d, 5" % (S_T, S_WAVE))
    A("v_add_u32 v12, s%d, v12" % S_T)
    A("v_and_b32 v13, 15, v%d" % V_LANE)
    A("v_cmp_eq_u32 vcc, 0, v13")
    lm = mask_begin(4)
    A("ds_write_b64 v12, v[4:5] offset:%d" % L_RED2)
    mask_end(lm, 4)
    A("s_waitcnt lgkmcnt(0)")
    A("s_barrier")
    l0 = if_wave0()
    A("v_lshlrev_b32 v3, 2, v%d" % V_LANE)
    A("v_cmp_gt_u32 vcc, 8, v%d" % V_LANE)
    lm = mask_begin(4)
    for w in range(8):
        A("ds_read_b32 v%d, v3 offset:%d" % (152 + w, L_RED2 + 32 * w))
    A("s_waitcnt lgkmcnt(0)")
    A("v_add_f32 v152, v152, v153"); A("v_add_f32 v154, v154, v155"); A("v_add_f32 v152, v152, v154")
    A("v_add_f32 v156, v156, v157"); A("v_add_f32 v158, v158, v159"); A("v_add_f32 v156, v156, v158")
    rne(152, 152); rne(156, 156)
    silu(160, 152, 161, 162, 163); rne(160, 160)
    A("v_mul_f32 v160, v160, v156"); rne(160, 160)
    A("s_lshl_b32 s%d, s%d, 5" % (S_T, S_R2)); A("s_add_u32 s%d, s%d, %d" % (S_T, S_T, WS_ACT))
    A("v_add_u32 v3, s%d, v3" % S_T)
    A("global_store_dword v3, v160, %s sc1" % sr(P_WS, 2))
    mask_end(lm, 4)
    g.label(l0)

    A("s_cmp_ge_u32 s%d, 80" % S_R2); A("s_cbranch_scc1 L_done")
    g.c("---- hop C / GEMV3 ----")
    A("v_lshlrev_b32 v3, 2, v0")
    A("v_add_u32 v3, %d, v3" % (WS_ACT + 2048))
    l = spin_begin()
    for i in range(3):
        A("global_load_dword v%d, v3, %s offset:%d sc1" % (152 + i, sr(P_WS, 2), 2048 * i - 2048))
    A("s_waitcnt vmcnt(0)")
    A("v_cmp_eq_u32 vcc, -1, v152")
    for k in range(1, 3):
        A("v_cmp_eq_u32 %s, -1, v%d" % (sr(6, 2), 152 + k)); A("s_or_b64 vcc, vcc, %s" % sr(6, 2))
    spin_end(l, 1)
    for k in range(8): A("v_mov_b32 v%d, 0" % ACC[k])
    for i in range(3):
        A("v_lshrrev_b32 v156, 16, v%d" % (152 + i))
        for k in range(4):
            A("v_dot2c_f32_bf16 v%d, v%d, v156" % (ACC[2 * k], TW3 + 4 * i + k))
            A("v_dot2c_f32_bf16 v%d, v%d, v%d" % (ACC[2 * k + 1], TW3 + 4 * i + k, 152 + i))
    dpp_steps(ACC, ["quad_perm:[1,0,3,2]", "quad_perm:[2,3,0,1]", "row_half_mirror", "row_mirror"])
    rg = swap_reduce(ACC, 32); rg = swap_reduce(rg, 16)
    A("v_lshrrev_b32 v12, 4, v%d" % V_LANE)
    A("v_lshlrev_b32 v12, 3, v12")
    A("s_lshl_b32 s%d, s%d, 5" % (S_T, S_WAVE))
    A("v_add_u32 v12, s%d, v12" % S_T)
    A("v_and_b32 v13, 15, v%d" % V_LANE)
    A("v_cmp_eq_u32 vcc, 0, v13")
    lm = mask_begin(4)
    A("ds_write_b64 v12, v[4:5] offset:%d" % L_RED3)
    mask_end(lm, 4)
    A("s_waitcnt lgkmcnt(0)")
    A("s_barrier")
    l0 = if_wave0()
    A("v_lshlrev_b32 v3, 2, v%d" % V_LANE)
    A("v_cmp_gt_u32 vcc, 8, v%d" % V_LANE)
    lm = mask_begin(4)
    for w in range(8):
        A("ds_read_b32 v%d, v3 offset:%d" % (152 + w, L_RED3 + 32 * w))
    A("s_lshl_b32 s%d, s%d, 5" % (S_T, S_R2))
    A("v_add_u32 v5, s%d, v3" % S_T)
    A("ds_read_b32 v160, v5 offset:%d" % L_X1)
    A("s_waitcnt lgkmcnt(0)")
    for st in (4, 2, 1):
        for k in range(st): A("v_add_f32 v%d, v%d, v%d" % (152 + k, 152 + k, 152 + k + st))
    rne(152, 152)
    A("v_mul_f32 v152, v152, v150"); rne(152, 152)
    A("v_add_f32 v152, v152, v160")
    A("v_cvt_pk_bf16_f32 v152, v152, v152")
    A("v_lshrrev_b32 v5, 1, v5")
    A("global_store_short v5, v152, %s" % sr(P_OUT, 2))
    mask_end(lm, 4)
    g.label(l0)
    g.label("L_done")
    A("s_endpgm")
    tail = ['.section .rodata,"a"', ".p2align 6", ".amdhsa_kernel " + KN,
            "  .amdhsa_next_free_vgpr 256", "  .amdhsa_next_free_sgpr 102", "  .amdhsa_accum_offset 256",
            "  .amdhsa_group_segment_fixed_size 0", "  .amdhsa_kernarg_size 112", "  .amdhsa_user_sgpr_count 2",
            "  .amdhsa_user_sgpr_kernarg_segment_ptr 1", "  .amdhsa_system_sgpr_workgroup_id_x 1",
            "  .amdhsa_float_denorm_mode_32 3", ".end_amdhsa_kernel"]
    return "\n".join(hdr + g.L + tail) + "\n"

if __name__ == "__main__":
    out = sys.argv[1] if len(sys.argv) > 1 else "adaLN_cond__mha_block_cached__swiglu_ffn__decode.s"
    open(out, "w").write(gen())
```
